```python
import torch

def _softmax(x, axis=-1):
    return torch.softmax(x, dim=axis)
def _gelu(x):
    return torch.nn.functional.gelu(x, approximate="tanh")
def _silu(x):
    return torch.nn.functional.silu(x)
def _sigmoid(x):
    return torch.sigmoid(x)
def _layernorm(x, axis=-1, eps=1e-5):
    m = x.mean(dim=axis, keepdim=True)
    v = x.var(dim=axis, keepdim=True, unbiased=False)
    return (x - m) / torch.sqrt(v + eps)
def _scatter_add(tgt, idx, src, axis=0):
    return tgt.clone().index_add_(axis, idx, src)
def _segment_sum(src, seg, n):
    out = torch.zeros((n,) + src.shape[1:], dtype=src.dtype)
    return out.index_add_(0, seg, src)
def _pad(x, pw):
    flat = tuple(v for pair in reversed(pw) for v in pair)
    return torch.nn.functional.pad(x, flat)

kernel_name = 'standalone__gqa_block_cached__near_ridge'

def setup_inputs():

    _w = (lambda a: (lambda t: t.to(torch.bfloat16) if t.is_floating_point() else t)(torch.as_tensor(a)))
    B, Sq, D = 16, 80, 512
    Hq, Hkv, Sk, Dh = 32, 8, 1024, 128
    assert Hq % Hkv == 0, (Hq, Hkv)
    return {
        "x": _w((lambda *s: torch.randn(*s, dtype=torch.bfloat16) * 0.8)(B, Sq, D)),
        "k_cache": _w((lambda *s: torch.randn(*s, dtype=torch.bfloat16) * 0.8)(B, Hkv, Sk, Dh)),
        "v_cache": _w((lambda *s: torch.randn(*s, dtype=torch.bfloat16) * 0.05)(B, Hkv, Sk, Dh)),
        "wq": _w((lambda *s: torch.randn(*s, dtype=torch.bfloat16) * 0.8)(D, Hq * Dh) * (D ** -0.5)),
        "wo": _w((lambda *s: torch.randn(*s, dtype=torch.bfloat16) * 0.05)(Hq * Dh, D) * ((Hq * Dh) ** -0.5)),
    }

def reference(x, k_cache, v_cache, wq, wo):
    B, Sq, D = x.shape
    Hq, Dh = 32, 128
    Hkv = k_cache.shape[1]
    rep = Hq // Hkv
    q = (lambda x, *d: x.permute(*d))((x @ wq).reshape(B, Sq, Hq, Dh), 0, 2, 1, 3)
    k = (lambda x, n, axis: torch.repeat_interleave(x, n, dim=axis))(k_cache, rep, axis=1)
    v = (lambda x, n, axis: torch.repeat_interleave(x, n, dim=axis))(v_cache, rep, axis=1)
    scores = torch.einsum("bhqd,bhkd->bhqk", q, k) * (Dh ** -0.5)
    p = _softmax(scores, axis=-1)
    o = torch.einsum("bhqk,bhkd->bhqd", p, v)
    return (lambda x, *d: x.permute(*d))(o, 0, 2, 1, 3).reshape(B, Sq, Hq * Dh) @ wo
```

```python
class Asm:
    def __init__(self):
        self.lines = []

    def __call__(self, s):
        for ln in s.strip("\n").split("\n"):
            self.lines.append("    " + ln.strip() if not ln.strip().endswith(":") else ln.strip())

    def raw(self, s):
        self.lines.append(s)

    def comment(self, s):
        self.lines.append("    ; " + s)

    def text(self):
        return "\n".join(self.lines) + "\n"


def vr(base, n=1):
    return f"v{base}" if n == 1 else f"v[{base}:{base + n - 1}]"


def ar(base, n=1):
    return f"a{base}" if n == 1 else f"a[{base}:{base + n - 1}]"


def sr(base, n=1):
    return f"s{base}" if n == 1 else f"s[{base}:{base + n - 1}]"


def kernel_desc(name, vgpr, agpr=0, sgpr=102):
    accum = (vgpr + 3) // 4 * 4
    nfv = accum + agpr if agpr else vgpr
    return f""".section .rodata,"a"
.p2align 6
.amdhsa_kernel {name}
  .amdhsa_next_free_vgpr {nfv}
  .amdhsa_next_free_sgpr {sgpr}
  .amdhsa_accum_offset {accum}
  .amdhsa_group_segment_fixed_size 0
  .amdhsa_kernarg_size 64
  .amdhsa_user_sgpr_count 2
  .amdhsa_user_sgpr_kernarg_segment_ptr 1
  .amdhsa_system_sgpr_workgroup_id_x 1
.end_amdhsa_kernel
"""


def kernel_head(name):
    return f""".text
.globl {name}
.p2align 8
.type {name},@function
{name}:
"""
```

```python
import sys
sys.path.insert(0, "tools")
from asmlib import *
import gen_k0

def build(path, parts):
    hdr = ""
    for (name, grid, block, text, desc, lds) in parts:
        hdr += f"; @launch kernel={name} grid=({grid},1,1) block=({block},1,1) lds={lds}\n"
    body = '.amdgcn_target "amdgcn-amd-amdhsa--gfx950"\n'
    for p in parts:
        body += p[3]
    for p in parts:
        body += p[4]
    open(path, "w").write(hdr + body)

if __name__ == "__main__":
    t, d, lds = gen_k0.gen_k0()
    build("k0test.s", [("k0_kernel", 256, 256, t, d, lds)])
```

```python
from asmlib import *
import math

WS_Q = 0
QSCALE = math.log2(math.e) / math.sqrt(128.0)
X_STRIDE = 1040
X_BYTES = 80 * X_STRIDE
WQ_BASE = 83968
NSLOT = 4
CHUNK = 4096
LDS_K0 = WQ_BASE + 4 * NSLOT * CHUNK


def f32hex(x):
    import struct
    return "0x%08x" % struct.unpack("<I", struct.pack("<f", x))[0]


def gen_k0(name="k0_kernel"):
    a = Asm()
    a.raw(kernel_head(name))
    a(f"""
    s_cmp_ge_u32 s2, 256
    s_cbranch_scc1 {name}_done
    s_load_dwordx2 s[4:5], s[0:1], 0
    s_load_dwordx2 s[6:7], s[0:1], 24
    s_load_dwordx2 s[8:9], s[0:1], 56
    s_and_b32 s29, s2, 7
    s_lshr_b32 s28, s2, 3
    s_and_b32 s30, s28, 1
    s_lshr_b32 s28, s28, 1
    v_and_b32 v1, 63, v0
    v_lshrrev_b32 v2, 6, v0
    s_nop 0
    v_readfirstlane_b32 s31, v2
    s_waitcnt lgkmcnt(0)
    s_mov_b32 s16, s4
    s_mov_b32 s17, s5
    s_mov_b32 s18, {16*80*512*2}
    s_mov_b32 s19, 0x00020000
    s_mov_b32 s20, s6
    s_mov_b32 s21, s7
    s_mov_b32 s22, {512*4096*2}
    s_mov_b32 s23, 0x00020000
    s_mov_b32 s24, s8
    s_mov_b32 s25, s9
    s_mov_b32 s26, {WS_Q + 16*32*80*128*2}
    s_mov_b32 s27, 0x00020000
    """)
    a("v_lshlrev_b32 v3, 4, v1")
    a("s_mul_i32 s32, s31, 20")
    a("s_mul_i32 s33, s28, 80")
    a("s_add_u32 s33, s33, s32")
    a("s_lshl_b32 s33, s33, 10")
    a(f"s_mul_i32 s34, s32, {X_STRIDE}")
    for r in range(20):
        a(f"s_mov_b32 m0, s34")
        a(f"s_nop 0")
        a(f"buffer_load_dwordx4 v3, s[16:19], s33 offen lds")
        a(f"s_add_u32 s33, s33, 1024")
        a(f"s_add_u32 s34, s34, {X_STRIDE}")
    a("""
    v_lshrrev_b32 v4, 3, v1
    v_lshlrev_b32 v4, 13, v4
    v_and_b32 v5, 7, v1
    v_lshrrev_b32 v5, 1, v5
    v_lshrrev_b32 v6, 4, v1
    v_xor_b32 v5, v5, v6
    v_lshlrev_b32 v5, 5, v5
    v_add_u32 v4, v4, v5
    v_and_b32 v5, 1, v1
    v_lshlrev_b32 v5, 4, v5
    v_add_u32 v4, v4, v5
    """)
    a("""
    s_lshl_b32 s35, s29, 2
    s_lshl_b32 s36, s30, 1
    s_add_u32 s35, s35, s36
    s_lshl_b32 s35, s35, 8
    s_lshl_b32 s36, s31, 7
    s_add_u32 s35, s35, s36
    """)
    a(f"s_lshl_b32 s36, s31, {int(math.log2(NSLOT*CHUNK))}")
    a(f"s_add_u32 s36, s36, {WQ_BASE}")

    def dma_chunk(ck):
        slot = ck % NSLOT
        for i in range(4):
            a(f"s_add_u32 s37, s36, {slot*CHUNK + i*1024}")
            a(f"s_mov_b32 m0, s37")
            a(f"s_add_u32 s38, s35, {(ck*32 + i*8) * 8192}")
            a(f"buffer_load_dwordx4 v4, s[20:23], s38 offen lds")

    for ck in range(NSLOT - 1):
        dma_chunk(ck)
    a("""
    v_lshrrev_b32 v5, 4, v1            ; g
    v_and_b32 v6, 15, v1               ; i
    v_lshrrev_b32 v7, 2, v6            ; r
    v_and_b32 v12, 3, v6               ; c
    v_lshlrev_b32 v13, 2, v5           ; 4g
    v_add_u32 v13, v13, v7             ; row
    v_lshrrev_b32 v14, 1, v13
    v_and_b32 v14, 3, v14              ; s
    v_lshlrev_b32 v13, 7, v13          ; row*128
    v_lshlrev_b32 v12, 3, v12          ; c*8
    v_add_u32 v13, v13, v12
    v_lshlrev_b32 v14, 5, v14
    v_add_u32 v13, v13, v14            ; A0
    v_add_u32 v8, s36, v13
    v_xor_b32 v9, 32, v8
    v_xor_b32 v10, 64, v8
    v_xor_b32 v11, 96, v8
    """)
    a(f"""
    v_mov_b32 v15, {X_STRIDE}
    v_mul_lo_u32 v16, v6, v15
    v_lshlrev_b32 v12, 3, v5
    v_add_u32 v16, v16, v12
    v_add_u32 v17, {16*X_STRIDE}, v16
    v_add_u32 v18, {32*X_STRIDE}, v16
    v_add_u32 v19, {48*X_STRIDE}, v16
    v_add_u32 v20, {64*X_STRIDE}, v16
    """)
    ACC = 128
    AF = [32, 48]
    BF = [64, 84]
    for i in range(80):
        a(f"v_mov_b32 v{ACC+i}, 0")
    a(f"s_waitcnt vmcnt({4*(NSLOT-2)})")
    a("s_barrier")

    def reads(ks, buf):
        slot = ks % NSLOT
        for ct in range(4):
            a(f"ds_read_b64_tr_b16 {vr(AF[buf]+4*ct,2)}, v{8+ct} offset:{slot*CHUNK}")
            a(f"ds_read_b64_tr_b16 {vr(AF[buf]+4*ct+2,2)}, v{8+ct} offset:{slot*CHUNK+2048}")
        for qt in range(5):
            a(f"ds_read2_b64 {vr(BF[buf]+4*qt,4)}, v{16+qt} offset0:{ks*8} offset1:{ks*8+4}")

    reads(0, 0)
    for ks in range(16):
        buf = ks & 1
        if ks + 1 < 16:
            n_after = 4 * (min(ks + NSLOT - 2, 15) - (ks + 1))
            a(f"s_waitcnt vmcnt({n_after})")
            reads(ks + 1, buf ^ 1)
            a("s_waitcnt lgkmcnt(13)")
        else:
            a("s_waitcnt lgkmcnt(0)")
        if ks + NSLOT - 1 < 16:
            dma_chunk(ks + NSLOT - 1)
        for ct in range(4):
            for qt in range(5):
                d = ACC + (ct * 5 + qt) * 4
                a(f"v_mfma_f32_16x16x32_bf16 {vr(d,4)}, {vr(AF[buf]+4*ct,4)}, {vr(BF[buf]+4*qt,4)}, {vr(d,4)}")
    a("s_nop 7")
    a("s_nop 7")
    a(f"s_mov_b32 s40, {f32hex(QSCALE)}")
    a("""
    s_lshl_b32 s41, s29, 2
    s_lshl_b32 s42, s30, 1
    s_add_u32 s41, s41, s42
    s_lshr_b32 s42, s31, 1
    s_add_u32 s41, s41, s42           ; h
    s_lshl_b32 s42, s28, 5
    s_add_u32 s41, s41, s42           ; b*32+h
    s_mul_i32 s41, s41, 20480         ; *80*128*2
    s_and_b32 s42, s31, 1
    s_lshl_b32 s42, s42, 7
    s_add_u32 s41, s41, s42           ; + (w%2)*64*2
    """)
    a(f"s_add_u32 s41, s41, {WS_Q}")
    for qt in range(5):
        a(f"s_add_u32 s{44+qt}, s41, {qt*4096}")
    a("""
    v_lshlrev_b32 v21, 8, v6          ; (l%16)*256
    v_lshlrev_b32 v22, 3, v5          ; 4g*2
    v_add_u32 v21, v21, v22
    """)
    for ct in range(4):
        for qt in range(5):
            d = ACC + (ct * 5 + qt) * 4
            t = 24 + ((ct * 5 + qt) % 4) * 2
            a(f"v_mul_f32 v{d}, s40, v{d}")
            a(f"v_mul_f32 v{d+1}, s40, v{d+1}")
            a(f"v_mul_f32 v{d+2}, s40, v{d+2}")
            a(f"v_mul_f32 v{d+3}, s40, v{d+3}")
            a(f"v_cvt_pk_bf16_f32 v{t}, v{d}, v{d+1}")
            a(f"v_cvt_pk_bf16_f32 v{t+1}, v{d+2}, v{d+3}")
            a(f"buffer_store_dwordx2 {vr(t,2)}, v21, s[24:27], s{44+qt} offen offset:{ct*32}")
    a("s_waitcnt vmcnt(0)")
    a(f"{name}_done:")
    a("s_endpgm")
    return a.text(), kernel_desc(name, 208, 0, 64), LDS_K0
```

```python
from asmlib import *
import math, struct

WS_Q = 0
WS_P = 16 * 32 * 80 * 128 * 2
K_RING = 0
V_RING = 65536
O_STRIDE = 528
O_BYTES = 80 * O_STRIDE
WO_RING = 43008
WO_NSLOT = 3
LDS_K1 = 160 * 1024 - 0
LDS_K1 = 141312

VOFF = 4
KADDR = 8
VADDR = 12
S_BUF = [32, 72]
P_REG = 112
KFR = 132
VFR = 164
NEGM = 196
L_REG = 216
M_REG = 221
TMP = 226
O_ACC = 0
Q_FR = 160

THRESH = 8.0


def f32hex(x):
    return "0x%08x" % struct.unpack("<I", struct.pack("<f", x))[0]


def interleave(a, mf, other, lead=0):
    n = len(mf)
    m = len(other)
    done = 0
    for i, x in enumerate(mf):
        a(x)
        if i < lead:
            continue
        want = (i + 1 - lead) * m // max(1, (n - lead))
        while done < want:
            a(other[done])
            done += 1
    while done < m:
        a(other[done])
        done += 1


def gen_k1(name="k1_kernel", part_f32=True, dump_o=False):
    a = Asm()
    a.raw(kernel_head(name))
    a(f"""
    s_cmp_ge_u32 s2, 256
    s_cbranch_scc1 {name}_done
    s_load_dwordx2 s[4:5], s[0:1], 8
    s_load_dwordx2 s[6:7], s[0:1], 16
    s_load_dwordx2 s[8:9], s[0:1], 32
    s_load_dwordx2 s[10:11], s[0:1], 56
    s_and_b32 s37, s2, 7
    s_lshr_b32 s36, s2, 3
    s_and_b32 s38, s36, 1
    s_lshr_b32 s36, s36, 1
    v_and_b32 v1, 63, v0
    v_lshrrev_b32 v2, 6, v0
    s_nop 0
    v_readfirstlane_b32 s39, v2
    s_waitcnt lgkmcnt(0)
    s_and_b32 s40, s39, 1
    s_lshr_b32 s41, s39, 1
    s_mov_b32 s16, s4
    s_mov_b32 s17, s5
    s_mov_b32 s18, {16*8*1024*128*2}
    s_mov_b32 s19, 0x00020000
    s_mov_b32 s20, s6
    s_mov_b32 s21, s7
    s_mov_b32 s22, {16*8*1024*128*2}
    s_mov_b32 s23, 0x00020000
    s_mov_b32 s24, s8
    s_mov_b32 s25, s9
    s_mov_b32 s26, {4096*512*2}
    s_mov_b32 s27, 0x00020000
    s_mov_b32 s28, s10
    s_mov_b32 s29, s11
    s_mov_b32 s30, {WS_P + 16*16*80*512*4}
    s_mov_b32 s31, 0x00020000
    """)
    a(f"""
    s_lshl_b32 s43, s41, 13
    s_cmp_eq_u32 s40, 0
    s_cselect_b32 s32, s16, s20
    s_cselect_b32 s33, s17, s21
    s_mov_b32 s34, s18
    s_mov_b32 s35, s19
    s_cselect_b32 s47, {K_RING}, {V_RING}
    s_add_u32 s43, s43, s47
    s_lshl_b32 s42, s36, 3
    s_add_u32 s42, s42, s37
    s_lshl_b32 s42, s42, 18
    s_lshl_b32 s47, s41, 17
    s_add_u32 s42, s42, s47
    """)
    a("""
    v_lshrrev_b32 v2, 4, v1
    v_and_b32 v3, 15, v1
    """)
    a(f"""
    s_lshl_b32 s47, s37, 2
    s_lshl_b32 s48, s38, 1
    s_add_u32 s47, s47, s48
    s_add_u32 s47, s47, s40
    s_lshl_b32 s48, s36, 5
    s_add_u32 s47, s47, s48
    s_mul_i32 s47, s47, 20480
    s_add_u32 s47, s47, {WS_Q}
    v_lshlrev_b32 v20, 8, v3
    v_lshlrev_b32 v21, 4, v2
    v_add_u32 v20, v20, v21
    """)
    for qt in range(5):
        a(f"s_add_u32 s48, s47, {qt*4096}")
        for ks in range(4):
            a(f"buffer_load_dwordx4 {ar(Q_FR+(qt*4+ks)*4,4)}, v20, s[28:31], s48 offen offset:{ks*64}")
    a("""
    v_lshlrev_b32 v20, 8, v2
    v_xor_b32 v21, v3, v2
    v_lshlrev_b32 v22, 1, v2
    v_xor_b32 v22, v3, v22
    """)
    a("v_cmp_eq_u32 vcc, 0, s40")
    a("s_nop 1")
    a("v_cndmask_b32 v21, v22, v21, vcc")
    a("s_cmp_eq_u32 s40, 0")
    a("s_cselect_b32 s47, 4, 8")
    a("s_cselect_b32 s48, 8, 0")
    a("s_cselect_b32 s49, 12, 8")
    a(f"""
    v_lshlrev_b32 v{VOFF}, 4, v21
    v_add_u32 v{VOFF}, v{VOFF}, v20
    v_xor_b32 v22, s47, v21
    v_lshlrev_b32 v{VOFF+1}, 4, v22
    v_add_u32 v{VOFF+1}, v{VOFF+1}, v20
    v_xor_b32 v22, s48, v21
    v_lshlrev_b32 v{VOFF+2}, 4, v22
    v_add_u32 v{VOFF+2}, v{VOFF+2}, v20
    v_xor_b32 v22, s49, v21
    v_lshlrev_b32 v{VOFF+3}, 4, v22
    v_add_u32 v{VOFF+3}, v{VOFF+3}, v20
    """)
    a(f"""
    v_xor_b32 v20, v2, v3
    v_lshlrev_b32 v20, 4, v20
    v_lshlrev_b32 v21, 8, v3
    v_add_u32 v20, v20, v21
    s_lshl_b32 s47, s41, 13
    s_add_u32 s48, s47, {K_RING}
    v_add_u32 v{KADDR}, s48, v20
    v_xor_b32 v{KADDR+1}, 64, v{KADDR}
    v_xor_b32 v{KADDR+2}, 128, v{KADDR}
    v_xor_b32 v{KADDR+3}, 192, v{KADDR}
    """)
    a(f"""
    v_lshrrev_b32 v20, 2, v3          ; r
    v_and_b32 v21, 3, v3              ; c
    v_lshlrev_b32 v22, 2, v2
    v_add_u32 v20, v20, v22           ; row
    v_and_b32 v22, 7, v20
    v_lshlrev_b32 v22, 5, v22
    v_lshlrev_b32 v20, 8, v20
    v_add_u32 v20, v20, v22
    v_lshlrev_b32 v21, 3, v21
    v_add_u32 v20, v20, v21
    s_add_u32 s48, s47, {V_RING}
    v_add_u32 v{VADDR}, s48, v20
    """)
    for dt in range(1, 8):
        a(f"v_xor_b32 v{VADDR+dt}, {dt*32}, v{VADDR}")

    issued = {"K": [], "V": []}

    def dma(tk, tv):
        if tk is None and tv is None:
            return
        lab = None
        if tk is None or tv is None:
            lab = a_label()
            a(f"s_cmp_eq_u32 s40, {1 if tk is not None else 0}")
            a(f"s_cbranch_scc1 {lab}")
        a("s_cmp_eq_u32 s40, 0")
        a(f"s_cselect_b32 s44, {tk if tk is not None else 0}, {tv if tv is not None else 0}")
        a("s_lshl_b32 s45, s44, 13")
        a("s_add_u32 s45, s45, s42")
        a("s_and_b32 s46, s44, 3")
        a("s_lshl_b32 s46, s46, 14")
        a("s_add_u32 s46, s46, s43")
        for i in range(8):
            a(f"s_add_u32 s47, s46, {i*1024}")
            a("s_mov_b32 m0, s47")
            a(f"s_add_u32 s48, s45, {i*1024}")
            a(f"buffer_load_dwordx4 v{VOFF + i % 4}, s[32:35], s48 offen lds")
        if lab:
            a(f"{lab}:")
        for i in range(8):
            if tk is not None:
                issued["K"].append(tk)
            if tv is not None:
                issued["V"].append(tv)

    _lab = [0]

    def a_label():
        _lab[0] += 1
        return f"{name}_L{_lab[0]}"

    def wait_tiles(tk, tv):
        cnt = []
        for kind, t in (("K", tk), ("V", tv)):
            if t is None:
                continue
            lst = issued[kind]
            last = max(i for i, x in enumerate(lst) if x == t)
            cnt.append(len(lst) - 1 - last)
        n = min(cnt)
        a(f"s_waitcnt vmcnt({min(n, 63)})")

    def kfrag_reads(t):
        slot = t % 4
        out = []
        for kt in range(2):
            for ks in range(4):
                out.append(f"ds_read_b128 {vr(KFR+(kt*4+ks)*4,4)}, v{KADDR+ks} offset:{slot*16384+kt*4096}")
        return out

    def vfrag_reads(t):
        slot = t % 4
        out = []
        for dt in range(8):
            out.append(f"ds_read_b64_tr_b16 {vr(VFR+dt*4,2)}, v{VADDR+dt} offset:{slot*16384}")
            out.append(f"ds_read_b64_tr_b16 {vr(VFR+dt*4+2,2)}, v{VADDR+dt} offset:{slot*16384+4096}")
        return out

    def qk_mfmas(sbuf):
        out = []
        for ks in range(4):
            for kt in range(2):
                for qt in range(5):
                    d = S_BUF[sbuf] + (kt * 5 + qt) * 4
                    c = NEGM + qt * 4 if ks == 0 else d
                    out.append(f"v_mfma_f32_16x16x32_bf16 {vr(d,4)}, {vr(KFR+(kt*4+ks)*4,4)}, {ar(Q_FR+(qt*4+ks)*4,4)}, {vr(c,4)}")
        return out

    def pv_mfmas():
        out = []
        for dt in range(8):
            for qt in range(5):
                d = O_ACC + (dt * 5 + qt) * 4
                out.append(f"v_mfma_f32_16x16x32_bf16 {ar(d,4)}, {vr(VFR+dt*4,4)}, {vr(P_REG+qt*4,4)}, {ar(d,4)}")
        return out

    def softmax_ops(sbuf):
        out = []
        for qt in range(5):
            for kt in range(2):
                s = S_BUF[sbuf] + (kt * 5 + qt) * 4
                for i in range(4):
                    out.append(f"v_exp_f32 v{s+i}, v{s+i}")
                out.append(f"v_add_f32 v{L_REG+qt}, v{L_REG+qt}, v{s}")
                out.append(f"v_add_f32 v{L_REG+qt}, v{L_REG+qt}, v{s+1}")
                out.append(f"v_cvt_pk_bf16_f32 v{P_REG+qt*4+kt*2}, v{s}, v{s+1}")
                out.append(f"v_add_f32 v{L_REG+qt}, v{L_REG+qt}, v{s+2}")
                out.append(f"v_add_f32 v{L_REG+qt}, v{L_REG+qt}, v{s+3}")
                out.append(f"v_cvt_pk_bf16_f32 v{P_REG+qt*4+kt*2+1}, v{s+2}, v{s+3}")
        return out

    def max_ops(sbuf):
        regs = [S_BUF[sbuf] + i for i in range(40)]
        out = []
        t = TMP
        out.append(f"v_max3_f32 v{t}, v{regs[0]}, v{regs[1]}, v{regs[2]}")
        k = 3
        while k + 1 < 40:
            out.append(f"v_max3_f32 v{t}, v{t}, v{regs[k]}, v{regs[k+1]}")
            k += 2
        if k < 40:
            out.append(f"v_max_f32 v{t}, v{t}, v{regs[k]}")
        return out

    def rare_path(sbuf, lab_back):
        a("s_nop 7")
        for qt in range(5):
            s0 = S_BUF[sbuf] + qt * 4
            s1 = S_BUF[sbuf] + (5 + qt) * 4
            t = TMP + 2
            a(f"v_max3_f32 v{t}, v{s0}, v{s0+1}, v{s0+2}")
            a(f"v_max3_f32 v{t}, v{t}, v{s0+3}, v{s1}")
            a(f"v_max3_f32 v{t}, v{t}, v{s1+1}, v{s1+2}")
            a(f"v_max_f32 v{t}, v{t}, v{s1+3}")
            a(f"v_mov_b32 v{t+1}, v{t}")
            a("s_nop 1")
            a(f"v_permlane32_swap_b32 v{t}, v{t+1}")
            a("s_nop 1")
            a(f"v_max_f32 v{t}, v{t}, v{t+1}")
            a(f"v_mov_b32 v{t+1}, v{t}")
            a("s_nop 1")
            a(f"v_permlane16_swap_b32 v{t}, v{t+1}")
            a("s_nop 1")
            a(f"v_max_f32 v{t}, v{t}, v{t+1}")
            a(f"v_max_f32 v{t}, s51, v{t}")
            a(f"v_sub_f32 v{t+1}, 0, v{t}")
            a(f"v_exp_f32 v{t+1}, v{t+1}")
            a(f"v_add_f32 v{M_REG+qt}, v{M_REG+qt}, v{t}")
            for i in range(4):
                a(f"v_sub_f32 v{NEGM+qt*4+i}, v{NEGM+qt*4+i}, v{t}")
                a(f"v_sub_f32 v{s0+i}, v{s0+i}, v{t}")
                a(f"v_sub_f32 v{s1+i}, v{s1+i}, v{t}")
            a(f"v_mul_f32 v{L_REG+qt}, v{L_REG+qt}, v{t+1}")
            for dt in range(8):
                d = O_ACC + (dt * 5 + qt) * 4
                for i in range(4):
                    a(f"v_accvgpr_read_b32 v{t+2+i}, a{d+i}")
                for i in range(4):
                    a(f"v_mul_f32 v{t+2+i}, v{t+2+i}, v{t+1}")
                for i in range(4):
                    a(f"v_accvgpr_write_b32 a{d+i}, v{t+2+i}")
        a(f"s_mov_b32 s50, {f32hex(THRESH)}")
        a("s_mov_b32 s51, 0")
        a("s_nop 1")
        a(f"s_branch {lab_back}")

    rare_blocks = []

    def check(sbuf):
        lab = a_label()
        back = a_label()
        a("s_nop 0")
        a(f"v_cmp_lt_f32 vcc, s50, v{TMP}")
        a("s_nop 1")
        a(f"s_cbranch_vccnz {lab}")
        a(f"{back}:")
        rare_blocks.append((lab, sbuf, back))

    for i in range(160):
        a(f"v_accvgpr_write_b32 a{O_ACC+i}, 0")
    for i in range(20):
        a(f"v_mov_b32 v{NEGM+i}, 0")
    for i in range(5):
        a(f"v_mov_b32 v{L_REG+i}, 0")
        a(f"v_mov_b32 v{M_REG+i}, 0")
    a("s_mov_b32 s50, 0xff800000")
    a("s_mov_b32 s51, 0xff800000")
    for t in range(4):
        dma(t, t if t < 3 else None)
    wait_tiles(0, None)
    a("s_barrier")
    for x in kfrag_reads(0):
        a(x)
    a("s_waitcnt lgkmcnt(0)")
    for x in qk_mfmas(0):
        a(x)
    wait_tiles(1, None)
    a("s_barrier")
    dma(4, None)
    for x in kfrag_reads(1):
        a(x)
    a("s_nop 4")
    for x in max_ops(0):
        a(x)
    check(0)
    NT = 16
    for j in range(NT):
        sb = j % 2
        last = (j == NT - 1)
        wait_tiles(j + 2 if j + 2 < NT else None, j)
        a("s_barrier")
        dma(j + 5 if j + 5 < NT else None, j + 3 if j + 3 < NT else None)
        other = vfrag_reads(j) + softmax_ops(sb)
        a("s_waitcnt lgkmcnt(0)")
        if not last:
            interleave(a, qk_mfmas(sb ^ 1), other)
        else:
            for x in other:
                a(x)
        a("s_waitcnt lgkmcnt(0)")
        a("s_nop 1")
        other = []
        if j + 2 < NT:
            other += kfrag_reads(j + 2)
        if not last:
            other += max_ops(sb ^ 1)
        interleave(a, pv_mfmas(), other, lead=3)
        if not last:
            check(sb ^ 1)
    a("s_nop 7")
    for qt in range(5):
        t = TMP + 2
        a(f"v_mov_b32 v{t}, v{L_REG+qt}")
        a("s_nop 1")
        a(f"v_permlane32_swap_b32 v{L_REG+qt}, v{t}")
        a("s_nop 1")
        a(f"v_add_f32 v{L_REG+qt}, v{L_REG+qt}, v{t}")
        a(f"v_mov_b32 v{t}, v{L_REG+qt}")
        a("s_nop 1")
        a(f"v_permlane16_swap_b32 v{L_REG+qt}, v{t}")
        a("s_nop 1")
        a(f"v_add_f32 v{L_REG+qt}, v{L_REG+qt}, v{t}")
    a("s_waitcnt vmcnt(0) lgkmcnt(0)")
    a("s_barrier")
    a("""
    s_mul_i32 s47, s40, 45056
    v_lshlrev_b32 v20, 4, v1
    v_add_u32 v20, s47, v20
    v_lshlrev_b32 v21, 2, v1
    v_add_u32 v21, s47, v21
    """)
    lab_r = a_label()
    lab_j = a_label()
    a("s_cmp_eq_u32 s41, 0")
    a(f"s_cbranch_scc1 {lab_r}")
    for r4 in range(40):
        for i in range(4):
            a(f"v_accvgpr_read_b32 v{32+r4%8*4+i}, a{O_ACC+r4*4+i}")
        a("s_nop 0")
        a(f"ds_write_b128 v20, {vr(32+r4%8*4,4)} offset:{r4*1024}")
    for qt in range(5):
        a(f"ds_write_b32 v21, v{M_REG+qt} offset:{40960+qt*256}")
        a(f"ds_write_b32 v21, v{L_REG+qt} offset:{40960+1280+qt*256}")
    a("s_waitcnt lgkmcnt(0)")
    a(f"{lab_r}:")
    a("s_barrier")
    a("s_cmp_eq_u32 s41, 1")
    a(f"s_cbranch_scc1 {lab_j}")
    O_BASE = 98304
    for qt in range(5):
        a(f"ds_read_b32 v{32+qt}, v21 offset:{40960+qt*256}")
        a(f"ds_read_b32 v{40+qt}, v21 offset:{40960+1280+qt*256}")
    a("s_waitcnt lgkmcnt(0)")
    for qt in range(5):
        a(f"v_max_f32 v48, v{M_REG+qt}, v{32+qt}")
        a(f"v_sub_f32 v49, v{M_REG+qt}, v48")
        a(f"v_sub_f32 v50, v{32+qt}, v48")
        a("v_exp_f32 v49, v49")
        a("v_exp_f32 v50, v50")
        a("s_nop 0")
        a(f"v_mul_f32 v51, v49, v{L_REG+qt}")
        a(f"v_fma_f32 v51, v50, v{40+qt}, v51")
        a("v_rcp_f32 v51, v51")
        a("s_nop 0")
        a(f"v_mul_f32 v{52+qt}, v49, v51")
        a(f"v_mul_f32 v{60+qt}, v50, v51")
    a(f"""
    v_mov_b32 v22, {O_STRIDE}
    v_mul_lo_u32 v22, v3, v22
    v_lshlrev_b32 v23, 4, v2
    v_add_u32 v22, v22, v23
    s_lshl_b32 s47, s40, 8
    s_add_u32 s47, s47, {O_BASE}
    v_add_u32 v22, s47, v22
    """)
    for dt in range(8):
        for qt in range(5):
            r4 = dt * 5 + qt
            a(f"ds_read_b128 v[72:75], v20 offset:{r4*1024}")
            for i in range(4):
                a(f"v_accvgpr_read_b32 v{76+i}, a{O_ACC+r4*4+i}")
            a("s_waitcnt lgkmcnt(0)")
            for i in range(4):
                a(f"v_mul_f32 v{76+i}, v{76+i}, v{52+qt}")
                a(f"v_fma_f32 v{76+i}, v{72+i}, v{60+qt}, v{76+i}")
            a("v_cvt_pk_bf16_f32 v80, v76, v77")
            a("v_cvt_pk_bf16_f32 v81, v78, v79")
            a(f"ds_write_b64 v22, v[80:81] offset:{qt*16*O_STRIDE + (dt//2)*64 + (dt%2)*8}")
    a("s_waitcnt lgkmcnt(0)")
    a(f"{lab_j}:")
    a("s_barrier")
    WO_R = 0
    a(f"""
    v_lshlrev_b32 v20, 10, v2
    v_lshlrev_b32 v21, 1, v2
    v_xor_b32 v21, v3, v21
    v_lshlrev_b32 v{VOFF}, 4, v21
    v_add_u32 v{VOFF}, v{VOFF}, v20
    v_xor_b32 v21, 8, v21
    v_lshlrev_b32 v{VOFF+1}, 4, v21
    v_add_u32 v{VOFF+1}, v{VOFF+1}, v20
    s_lshl_b32 s47, s37, 2
    s_lshl_b32 s48, s38, 1
    s_add_u32 s47, s47, s48
    s_lshl_b32 s47, s47, 17
    s_lshl_b32 s48, s39, 8
    s_add_u32 s45, s47, s48
    s_mul_i32 s46, s39, {WO_NSLOT*8192}
    s_add_u32 s46, s46, {WO_R}
    """)
    a(f"""
    v_lshrrev_b32 v20, 2, v3
    v_and_b32 v21, 3, v3
    v_lshlrev_b32 v22, 2, v2
    v_add_u32 v20, v20, v22
    v_and_b32 v22, 7, v20
    v_lshlrev_b32 v22, 5, v22
    v_lshlrev_b32 v20, 8, v20
    v_add_u32 v20, v20, v22
    v_lshlrev_b32 v21, 3, v21
    v_add_u32 v20, v20, v21
    v_add_u32 v{VADDR}, s46, v20
    """)
    for dt in range(1, 8):
        a(f"v_xor_b32 v{VADDR+dt}, {dt*32}, v{VADDR}")
    a(f"""
    v_mov_b32 v22, {O_STRIDE}
    v_mul_lo_u32 v22, v3, v22
    v_lshlrev_b32 v23, 4, v2
    v_add_u32 v22, v22, v23
    v_add_u32 v24, {O_BASE}, v22
    v_add_u32 v25, {O_BASE+16*O_STRIDE}, v22
    v_add_u32 v26, {O_BASE+32*O_STRIDE}, v22
    v_add_u32 v27, {O_BASE+48*O_STRIDE}, v22
    v_add_u32 v28, {O_BASE+64*O_STRIDE}, v22
    """)

    def wo_dma(ck):
        slot = ck % WO_NSLOT
        for i in range(8):
            a(f"s_add_u32 s47, s46, {slot*8192+i*1024}")
            a("s_mov_b32 m0, s47")
            a(f"s_add_u32 s48, s45, {(ck*32+i*4)*1024}")
            a(f"buffer_load_dwordx4 v{VOFF + i % 2}, s[24:27], s48 offen lds")

    for ck in range(WO_NSLOT - 1):
        wo_dma(ck)
    for i in range(160):
        a(f"v_accvgpr_write_b32 a{i}, 0")
    AFB = [32, 64]
    BFB = [96, 116]

    def oreads(ck, buf):
        slot = ck % WO_NSLOT
        for ct in range(8):
            a(f"ds_read_b64_tr_b16 {vr(AFB[buf]+ct*4,2)}, v{VADDR+ct} offset:{slot*8192}")
            a(f"ds_read_b64_tr_b16 {vr(AFB[buf]+ct*4+2,2)}, v{VADDR+ct} offset:{slot*8192+4096}")
        for qt in range(5):
            a(f"ds_read_b128 {vr(BFB[buf]+qt*4,4)}, v{24+qt} offset:{ck*64}")

    a(f"s_waitcnt vmcnt({8*(WO_NSLOT-2)})")
    oreads(0, 0)
    for ck in range(8):
        buf = ck & 1
        if ck + 1 < 8:
            n_after = 8 * (min(ck + WO_NSLOT - 2, 7) - (ck + 1))
            a(f"s_waitcnt vmcnt({n_after})")
            oreads(ck + 1, buf ^ 1)
            a("s_waitcnt lgkmcnt(15)")
        else:
            a("s_waitcnt lgkmcnt(0)")
        if ck + WO_NSLOT - 1 < 8:
            wo_dma(ck + WO_NSLOT - 1)
        for ct in range(8):
            for qt in range(5):
                d = (ct * 5 + qt) * 4
                a(f"v_mfma_f32_16x16x32_bf16 {ar(d,4)}, {vr(AFB[buf]+ct*4,4)}, {vr(BFB[buf]+qt*4,4)}, {ar(d,4)}")
    a("s_nop 7")
    a("s_nop 7")
    a(f"""
    s_lshl_b32 s47, s37, 1
    s_add_u32 s47, s47, s38
    s_lshl_b32 s47, s47, 4
    s_add_u32 s47, s47, s36           ; part*16 + b
    s_mul_i32 s47, s47, {80*512*4}
    s_lshl_b32 s48, s39, 9
    s_add_u32 s47, s47, s48           ; + w*128*4
    s_add_u32 s47, s47, {WS_P}
    v_lshlrev_b32 v20, 11, v3         ; q*2048
    v_lshlrev_b32 v21, 4, v2          ; 4g*4
    v_add_u32 v20, v20, v21
    """)
    for qt in range(5):
        a(f"s_add_u32 s{52+qt}, s47, {qt*16*2048}")
    for ct in range(8):
        for qt in range(5):
            d = (ct * 5 + qt) * 4
            a(f"buffer_store_dwordx4 {ar(d,4)}, v20, s[28:31], s{52+qt} offen offset:{ct*64}")
    a("s_waitcnt vmcnt(0)")
    a(f"s_branch {name}_done")
    for (lab, sbuf, back) in rare_blocks:
        a(f"{lab}:")
        rare_path(sbuf, back)
    a(f"{name}_done:")
    a("s_endpgm")
    return a.text(), kernel_desc(name, 256, 240, 64), LDS_K1
```

```python
from asmlib import *
WS_P = 16 * 32 * 80 * 128 * 2
N = 16*80*512

def gen_k2(name="k2_kernel"):
    a = Asm()
    a.raw(kernel_head(name))
    a(f"""
    s_load_dwordx2 s[4:5], s[0:1], 40
    s_load_dwordx2 s[6:7], s[0:1], 56
    s_waitcnt lgkmcnt(0)
    s_mov_b32 s8, s4
    s_mov_b32 s9, s5
    s_mov_b32 s10, {N*2}
    s_mov_b32 s11, 0x00020000
    s_mov_b32 s12, s6
    s_mov_b32 s13, s7
    s_mov_b32 s14, {WS_P + 16*N*4}
    s_mov_b32 s15, 0x00020000
    s_lshl_b32 s3, s2, 8
    v_add_u32 v1, s3, v0
    v_lshlrev_b32 v2, 4, v1
    v_add_u32 v2, {WS_P}, v2
    s_mov_b32 s16, 0
    """)
    for p in range(16):
        a(f"buffer_load_dwordx4 {vr(8+p*4,4)}, v2, s[12:15], s16 offen")
        a(f"s_add_u32 s16, s16, {N*4}")
    for p in range(1, 16):
        a(f"s_waitcnt vmcnt({15-p})")
        for i in range(4):
            a(f"v_add_f32 v{8+i}, v{8+i}, v{8+p*4+i}")
    a("""
    v_cvt_pk_bf16_f32 v4, v8, v9
    v_cvt_pk_bf16_f32 v5, v10, v11
    v_lshlrev_b32 v3, 3, v1
    buffer_store_dwordx2 v[4:5], v3, s[8:11], 0 offen
    s_waitcnt vmcnt(0)
    s_endpgm
    """)
    return a.text(), kernel_desc(name, 72, 0, 32), 0
```

```python
import sys
sys.path.insert(0, "tools")
from asmlib import *
import gen_k0, gen_k1, gen_k2
from build_exp import build

def main(path):
    t0, d0, l0 = gen_k0.gen_k0()
    t1, d1, l1 = gen_k1.gen_k1()
    t2, d2, l2 = gen_k2.gen_k2()
    build(path, [("k0_kernel", 256, 256, t0, d0, l0), ("k1_kernel", 256, 256, t1, d1, l1), ("k2_kernel", 640, 256, t2, d2, l2)])

if __name__ == "__main__":
    main(sys.argv[1] if len(sys.argv) > 1 else "full.s")
```

```python
from asmlib import *
import math, struct

WS_Q = 0
WS_P = 16 * 32 * 80 * 128 * 2
K_RING = 0
V_RING = 65536
O_STRIDE = 528
O_BYTES = 80 * O_STRIDE
WO_RING = 43008
WO_NSLOT = 3
LDS_K1 = 160 * 1024 - 0
LDS_K1 = 141312

VOFF = 4
KADDR = 8
VADDR = 12
S_BUF = [32, 72]
P_REG = 112
KFR = 132
VFR = 164
NEGM = 196
L_REG = 216
M_REG = 221
TMP = 226
O_ACC = 0
Q_FR = 160

THRESH = 8.0


def f32hex(x):
    return "0x%08x" % struct.unpack("<I", struct.pack("<f", x))[0]


def interleave(a, mf, other, lead=0):
    n = len(mf)
    m = len(other)
    done = 0
    for i, x in enumerate(mf):
        a(x)
        if i < lead:
            continue
        want = (i + 1 - lead) * m // max(1, (n - lead))
        while done < want:
            a(other[done])
            done += 1
    while done < m:
        a(other[done])
        done += 1


WS_DBG = 200 * 1024 * 1024


def gen_k1(name="k1_kernel", part_f32=True, dump_o=False, stamps=False):
    a = Asm()
    a.raw(kernel_head(name))
    _st = [0]

    def stamp():
        if not stamps:
            return
        i = _st[0]
        _st[0] += 1
        a("s_memtime s[60:61]")
        a("s_waitcnt lgkmcnt(0)")
        a(f"v_mov_b32 v{234+i}, s60")

    a(f"""
    s_cmp_ge_u32 s2, 256
    s_cbranch_scc1 {name}_done
    s_load_dwordx2 s[4:5], s[0:1], 8
    s_load_dwordx2 s[6:7], s[0:1], 16
    s_load_dwordx2 s[8:9], s[0:1], 32
    s_load_dwordx2 s[10:11], s[0:1], 56
    s_and_b32 s37, s2, 7
    s_lshr_b32 s36, s2, 3
    s_and_b32 s38, s36, 1
    s_lshr_b32 s36, s36, 1
    v_and_b32 v1, 63, v0
    v_lshrrev_b32 v2, 6, v0
    s_nop 0
    v_readfirstlane_b32 s39, v2
    s_waitcnt lgkmcnt(0)
    s_and_b32 s40, s39, 1
    s_lshr_b32 s41, s39, 1
    s_mov_b32 s16, s4
    s_mov_b32 s17, s5
    s_mov_b32 s18, {16*8*1024*128*2}
    s_mov_b32 s19, 0x00020000
    s_mov_b32 s20, s6
    s_mov_b32 s21, s7
    s_mov_b32 s22, {16*8*1024*128*2}
    s_mov_b32 s23, 0x00020000
    s_mov_b32 s24, s8
    s_mov_b32 s25, s9
    s_mov_b32 s26, {4096*512*2}
    s_mov_b32 s27, 0x00020000
    s_mov_b32 s28, s10
    s_mov_b32 s29, s11
    s_mov_b32 s30, {WS_P + 16*16*80*512*4}
    s_mov_b32 s31, 0x00020000
    """)
    a(f"""
    s_lshl_b32 s43, s41, 13
    s_cmp_eq_u32 s40, 0
    s_cselect_b32 s32, s16, s20
    s_cselect_b32 s33, s17, s21
    s_mov_b32 s34, s18
    s_mov_b32 s35, s19
    s_cselect_b32 s47, {K_RING}, {V_RING}
    s_add_u32 s43, s43, s47
    s_lshl_b32 s42, s36, 3
    s_add_u32 s42, s42, s37
    s_lshl_b32 s42, s42, 18
    s_lshl_b32 s47, s41, 17
    s_add_u32 s42, s42, s47
    """)
    a("""
    v_lshrrev_b32 v2, 4, v1
    v_and_b32 v3, 15, v1
    """)
    a(f"""
    s_lshl_b32 s47, s37, 2
    s_lshl_b32 s48, s38, 1
    s_add_u32 s47, s47, s48
    s_add_u32 s47, s47, s40
    s_lshl_b32 s48, s36, 5
    s_add_u32 s47, s47, s48
    s_mul_i32 s47, s47, 20480
    s_add_u32 s47, s47, {WS_Q}
    v_lshlrev_b32 v20, 8, v3
    v_lshlrev_b32 v21, 4, v2
    v_add_u32 v20, v20, v21
    """)
    for qt in range(5):
        a(f"s_add_u32 s48, s47, {qt*4096}")
        for ks in range(4):
            a(f"buffer_load_dwordx4 {ar(Q_FR+(qt*4+ks)*4,4)}, v20, s[28:31], s48 offen offset:{ks*64}")
    a("""
    v_lshlrev_b32 v20, 8, v2
    v_xor_b32 v21, v3, v2
    v_lshlrev_b32 v22, 1, v2
    v_xor_b32 v22, v3, v22
    """)
    a("v_cmp_eq_u32 vcc, 0, s40")
    a("s_nop 1")
    a("v_cndmask_b32 v21, v22, v21, vcc")
    a("s_cmp_eq_u32 s40, 0")
    a("s_cselect_b32 s47, 4, 8")
    a("s_cselect_b32 s48, 8, 0")
    a("s_cselect_b32 s49, 12, 8")
    a(f"""
    v_lshlrev_b32 v{VOFF}, 4, v21
    v_add_u32 v{VOFF}, v{VOFF}, v20
    v_xor_b32 v22, s47, v21
    v_lshlrev_b32 v{VOFF+1}, 4, v22
    v_add_u32 v{VOFF+1}, v{VOFF+1}, v20
    v_xor_b32 v22, s48, v21
    v_lshlrev_b32 v{VOFF+2}, 4, v22
    v_add_u32 v{VOFF+2}, v{VOFF+2}, v20
    v_xor_b32 v22, s49, v21
    v_lshlrev_b32 v{VOFF+3}, 4, v22
    v_add_u32 v{VOFF+3}, v{VOFF+3}, v20
    """)
    a(f"""
    v_xor_b32 v20, v2, v3
    v_lshlrev_b32 v20, 4, v20
    v_lshlrev_b32 v21, 8, v3
    v_add_u32 v20, v20, v21
    s_lshl_b32 s47, s41, 13
    s_add_u32 s48, s47, {K_RING}
    v_add_u32 v{KADDR}, s48, v20
    v_xor_b32 v{KADDR+1}, 64, v{KADDR}
    v_xor_b32 v{KADDR+2}, 128, v{KADDR}
    v_xor_b32 v{KADDR+3}, 192, v{KADDR}
    """)
    a(f"""
    v_lshrrev_b32 v20, 2, v3          ; r
    v_and_b32 v21, 3, v3              ; c
    v_lshlrev_b32 v22, 2, v2
    v_add_u32 v20, v20, v22           ; row
    v_and_b32 v22, 7, v20
    v_lshlrev_b32 v22, 5, v22
    v_lshlrev_b32 v20, 8, v20
    v_add_u32 v20, v20, v22
    v_lshlrev_b32 v21, 3, v21
    v_add_u32 v20, v20, v21
    s_add_u32 s48, s47, {V_RING}
    v_add_u32 v{VADDR}, s48, v20
    """)
    for dt in range(1, 8):
        a(f"v_xor_b32 v{VADDR+dt}, {dt*32}, v{VADDR}")

    issued = {"K": [], "V": []}

    def dma(tk, tv):
        if tk is None and tv is None:
            return
        lab = None
        if tk is None or tv is None:
            lab = a_label()
            a(f"s_cmp_eq_u32 s40, {1 if tk is not None else 0}")
            a(f"s_cbranch_scc1 {lab}")
        a("s_cmp_eq_u32 s40, 0")
        a(f"s_cselect_b32 s44, {tk if tk is not None else 0}, {tv if tv is not None else 0}")
        a("s_lshl_b32 s45, s44, 13")
        a("s_add_u32 s45, s45, s42")
        a("s_and_b32 s46, s44, 3")
        a("s_lshl_b32 s46, s46, 14")
        a("s_add_u32 s46, s46, s43")
        for i in range(8):
            a(f"s_add_u32 s47, s46, {i*1024}")
            a("s_mov_b32 m0, s47")
            a(f"s_add_u32 s48, s45, {i*1024}")
            a(f"buffer_load_dwordx4 v{VOFF + i % 4}, s[32:35], s48 offen lds")
        if lab:
            a(f"{lab}:")
        for i in range(8):
            if tk is not None:
                issued["K"].append(tk)
            if tv is not None:
                issued["V"].append(tv)

    _lab = [0]

    def a_label():
        _lab[0] += 1
        return f"{name}_L{_lab[0]}"

    def wait_tiles(tk, tv):
        cnt = []
        for kind, t in (("K", tk), ("V", tv)):
            if t is None:
                continue
            lst = issued[kind]
            last = max(i for i, x in enumerate(lst) if x == t)
            cnt.append(len(lst) - 1 - last)
        n = min(cnt)
        a(f"s_waitcnt vmcnt({min(n, 63)})")

    def kfrag_reads(t):
        slot = t % 4
        out = []
        for kt in range(2):
            for ks in range(4):
                out.append(f"ds_read_b128 {vr(KFR+(kt*4+ks)*4,4)}, v{KADDR+ks} offset:{slot*16384+kt*4096}")
        return out

    def vfrag_reads(t):
        slot = t % 4
        out = []
        for dt in range(8):
            out.append(f"ds_read_b64_tr_b16 {vr(VFR+dt*4,2)}, v{VADDR+dt} offset:{slot*16384}")
            out.append(f"ds_read_b64_tr_b16 {vr(VFR+dt*4+2,2)}, v{VADDR+dt} offset:{slot*16384+4096}")
        return out

    def qk_mfmas(sbuf):
        out = []
        for ks in range(4):
            for kt in range(2):
                for qt in range(5):
                    d = S_BUF[sbuf] + (kt * 5 + qt) * 4
                    c = NEGM + qt * 4 if ks == 0 else d
                    out.append(f"v_mfma_f32_16x16x32_bf16 {vr(d,4)}, {vr(KFR+(kt*4+ks)*4,4)}, {ar(Q_FR+(qt*4+ks)*4,4)}, {vr(c,4)}")
        return out

    def pv_mfmas():
        out = []
        for dt in range(8):
            for qt in range(5):
                d = O_ACC + (dt * 5 + qt) * 4
                out.append(f"v_mfma_f32_16x16x32_bf16 {ar(d,4)}, {vr(VFR+dt*4,4)}, {vr(P_REG+qt*4,4)}, {ar(d,4)}")
        return out

    def softmax_ops(sbuf):
        out = []
        for qt in range(5):
            for kt in range(2):
                s = S_BUF[sbuf] + (kt * 5 + qt) * 4
                for i in range(4):
                    out.append(f"v_exp_f32 v{s+i}, v{s+i}")
                out.append(f"v_cvt_pk_bf16_f32 v{P_REG+qt*4+kt*2}, v{s}, v{s+1}")
                out.append(f"v_cvt_pk_bf16_f32 v{P_REG+qt*4+kt*2+1}, v{s+2}, v{s+3}")
        return out

    def sum_ops(sbuf):
        out = []
        for k in range(8):
            for qt in range(5):
                s = S_BUF[sbuf] + ((k // 4) * 5 + qt) * 4 + k % 4
                out.append(f"v_add_f32 v{L_REG+qt}, v{L_REG+qt}, v{s}")
        return out

    def max_ops(sbuf):
        regs = [S_BUF[sbuf] + i for i in range(40)]
        out = []
        t = TMP
        out.append(f"v_max3_f32 v{t}, v{regs[0]}, v{regs[1]}, v{regs[2]}")
        k = 3
        while k + 1 < 40:
            out.append(f"v_max3_f32 v{t}, v{t}, v{regs[k]}, v{regs[k+1]}")
            k += 2
        if k < 40:
            out.append(f"v_max_f32 v{t}, v{t}, v{regs[k]}")
        return out

    def rare_path(sbuf, lab_back):
        a("s_nop 7")
        for qt in range(5):
            s0 = S_BUF[sbuf] + qt * 4
            s1 = S_BUF[sbuf] + (5 + qt) * 4
            t = TMP + 2
            a(f"v_max3_f32 v{t}, v{s0}, v{s0+1}, v{s0+2}")
            a(f"v_max3_f32 v{t}, v{t}, v{s0+3}, v{s1}")
            a(f"v_max3_f32 v{t}, v{t}, v{s1+1}, v{s1+2}")
            a(f"v_max_f32 v{t}, v{t}, v{s1+3}")
            a(f"v_mov_b32 v{t+1}, v{t}")
            a("s_nop 1")
            a(f"v_permlane32_swap_b32 v{t}, v{t+1}")
            a("s_nop 1")
            a(f"v_max_f32 v{t}, v{t}, v{t+1}")
            a(f"v_mov_b32 v{t+1}, v{t}")
            a("s_nop 1")
            a(f"v_permlane16_swap_b32 v{t}, v{t+1}")
            a("s_nop 1")
            a(f"v_max_f32 v{t}, v{t}, v{t+1}")
            a(f"v_max_f32 v{t}, s51, v{t}")
            a(f"v_sub_f32 v{t+1}, 0, v{t}")
            a(f"v_exp_f32 v{t+1}, v{t+1}")
            a(f"v_add_f32 v{M_REG+qt}, v{M_REG+qt}, v{t}")
            for i in range(4):
                a(f"v_sub_f32 v{NEGM+qt*4+i}, v{NEGM+qt*4+i}, v{t}")
                a(f"v_sub_f32 v{s0+i}, v{s0+i}, v{t}")
                a(f"v_sub_f32 v{s1+i}, v{s1+i}, v{t}")
            a(f"v_mul_f32 v{L_REG+qt}, v{L_REG+qt}, v{t+1}")
            for dt in range(8):
                d = O_ACC + (dt * 5 + qt) * 4
                for i in range(4):
                    a(f"v_accvgpr_read_b32 v{t+2+i}, a{d+i}")
                for i in range(4):
                    a(f"v_mul_f32 v{t+2+i}, v{t+2+i}, v{t+1}")
                for i in range(4):
                    a(f"v_accvgpr_write_b32 a{d+i}, v{t+2+i}")
        a(f"s_mov_b32 s50, {f32hex(THRESH)}")
        a("s_mov_b32 s51, 0")
        a("s_nop 1")
        a(f"s_branch {lab_back}")

    rare_blocks = []

    def check(sbuf):
        lab = a_label()
        back = a_label()
        a("s_nop 0")
        a(f"v_cmp_lt_f32 vcc, s50, v{TMP}")
        a("s_nop 1")
        a(f"s_cbranch_vccnz {lab}")
        a(f"{back}:")
        rare_blocks.append((lab, sbuf, back))

    for i in range(160):
        a(f"v_accvgpr_write_b32 a{O_ACC+i}, 0")
    for i in range(20):
        a(f"v_mov_b32 v{NEGM+i}, 0")
    for i in range(5):
        a(f"v_mov_b32 v{L_REG+i}, 0")
        a(f"v_mov_b32 v{M_REG+i}, 0")
    a("s_mov_b32 s50, 0xff800000")
    a("s_mov_b32 s51, 0xff800000")
    stamp()
    for t in range(4):
        dma(t, t if t < 3 else None)
    wait_tiles(0, None)
    a("s_barrier")
    for x in kfrag_reads(0):
        a(x)
    a("s_waitcnt lgkmcnt(0)")
    for x in qk_mfmas(0):
        a(x)
    wait_tiles(1, None)
    a("s_barrier")
    dma(4, None)
    for x in kfrag_reads(1):
        a(x)
    a("s_nop 4")
    for x in max_ops(0):
        a(x)
    check(0)
    NT = 16
    for j in range(NT):
        sb = j % 2
        last = (j == NT - 1)
        stamp()
        wait_tiles(j + 2 if j + 2 < NT else None, j)
        a("s_barrier")
        dma(j + 5 if j + 5 < NT else None, j + 3 if j + 3 < NT else None)
        other = vfrag_reads(j) + softmax_ops(sb)
        a("s_waitcnt lgkmcnt(0)")
        if not last:
            interleave(a, qk_mfmas(sb ^ 1), other)
        else:
            for x in other:
                a(x)
        a("s_waitcnt lgkmcnt(0)")
        a("s_nop 1")
        other = []
        if j + 2 < NT:
            other += kfrag_reads(j + 2)
        other += sum_ops(sb)
        if not last:
            other += max_ops(sb ^ 1)
        interleave(a, pv_mfmas(), other, lead=3)
        if not last:
            check(sb ^ 1)
    stamp()
    a("s_nop 7")
    for qt in range(5):
        t = TMP + 2
        a(f"v_mov_b32 v{t}, v{L_REG+qt}")
        a("s_nop 1")
        a(f"v_permlane32_swap_b32 v{L_REG+qt}, v{t}")
        a("s_nop 1")
        a(f"v_add_f32 v{L_REG+qt}, v{L_REG+qt}, v{t}")
        a(f"v_mov_b32 v{t}, v{L_REG+qt}")
        a("s_nop 1")
        a(f"v_permlane16_swap_b32 v{L_REG+qt}, v{t}")
        a("s_nop 1")
        a(f"v_add_f32 v{L_REG+qt}, v{L_REG+qt}, v{t}")
    a("s_waitcnt vmcnt(0) lgkmcnt(0)")
    a("s_barrier")
    a("""
    s_mul_i32 s47, s40, 45056
    v_lshlrev_b32 v20, 4, v1
    v_add_u32 v20, s47, v20
    v_lshlrev_b32 v21, 2, v1
    v_add_u32 v21, s47, v21
    """)
    lab_r = a_label()
    lab_j = a_label()
    a("s_cmp_eq_u32 s41, 0")
    a(f"s_cbranch_scc1 {lab_r}")
    for r4 in range(40):
        for i in range(4):
            a(f"v_accvgpr_read_b32 v{32+r4%8*4+i}, a{O_ACC+r4*4+i}")
        a("s_nop 0")
        a(f"ds_write_b128 v20, {vr(32+r4%8*4,4)} offset:{r4*1024}")
    for qt in range(5):
        a(f"ds_write_b32 v21, v{M_REG+qt} offset:{40960+qt*256}")
        a(f"ds_write_b32 v21, v{L_REG+qt} offset:{40960+1280+qt*256}")
    a("s_waitcnt lgkmcnt(0)")
    a(f"{lab_r}:")
    a("s_barrier")
    a("s_cmp_eq_u32 s41, 1")
    a(f"s_cbranch_scc1 {lab_j}")
    O_BASE = 98304
    for qt in range(5):
        a(f"ds_read_b32 v{32+qt}, v21 offset:{40960+qt*256}")
        a(f"ds_read_b32 v{40+qt}, v21 offset:{40960+1280+qt*256}")
    a("s_waitcnt lgkmcnt(0)")
    for qt in range(5):
        a(f"v_max_f32 v48, v{M_REG+qt}, v{32+qt}")
        a(f"v_sub_f32 v49, v{M_REG+qt}, v48")
        a(f"v_sub_f32 v50, v{32+qt}, v48")
        a("v_exp_f32 v49, v49")
        a("v_exp_f32 v50, v50")
        a("s_nop 0")
        a(f"v_mul_f32 v51, v49, v{L_REG+qt}")
        a(f"v_fma_f32 v51, v50, v{40+qt}, v51")
        a("v_rcp_f32 v51, v51")
        a("s_nop 0")
        a(f"v_mul_f32 v{52+qt}, v49, v51")
        a(f"v_mul_f32 v{60+qt}, v50, v51")
    a(f"""
    v_mov_b32 v22, {O_STRIDE}
    v_mul_lo_u32 v22, v3, v22
    v_lshlrev_b32 v23, 4, v2
    v_add_u32 v22, v22, v23
    s_lshl_b32 s47, s40, 8
    s_add_u32 s47, s47, {O_BASE}
    v_add_u32 v22, s47, v22
    """)
    W = 10
    tiles = [(dt, qt) for dt in range(8) for qt in range(5)]
    for n in range(min(W, 40)):
        a(f"ds_read_b128 {vr(72+4*(n%W),4)}, v20 offset:{n*1024}")
    for n, (dt, qt) in enumerate(tiles):
        r4 = dt * 5 + qt
        rb = 72 + 4 * (n % W)
        tb = 116 + 6 * (n % 4)
        for i in range(4):
            a(f"v_accvgpr_read_b32 v{tb+i}, a{O_ACC+r4*4+i}")
        a(f"s_waitcnt lgkmcnt({min(W-1, 39-n) + min(n,3) if False else min(W-1, 39-n)})")
        for i in range(4):
            a(f"v_mul_f32 v{tb+i}, v{tb+i}, v{52+qt}")
        for i in range(4):
            a(f"v_fma_f32 v{tb+i}, v{rb+i}, v{60+qt}, v{tb+i}")
        a(f"v_cvt_pk_bf16_f32 v{tb+4}, v{tb}, v{tb+1}")
        a(f"v_cvt_pk_bf16_f32 v{tb+5}, v{tb+2}, v{tb+3}")
        a(f"ds_write_b64 v22, {vr(tb+4,2)} offset:{qt*16*O_STRIDE + (dt//2)*64 + (dt%2)*8}")
        if n + W < 40:
            a(f"ds_read_b128 {vr(rb,4)}, v20 offset:{(n+W)*1024}")
    a("s_waitcnt lgkmcnt(0)")
    a(f"{lab_j}:")
    a("s_barrier")
    stamp()
    WO_R = 0
    a(f"""
    v_lshlrev_b32 v20, 10, v2
    v_lshlrev_b32 v21, 1, v2
    v_xor_b32 v21, v3, v21
    v_lshlrev_b32 v{VOFF}, 4, v21
    v_add_u32 v{VOFF}, v{VOFF}, v20
    v_xor_b32 v21, 8, v21
    v_lshlrev_b32 v{VOFF+1}, 4, v21
    v_add_u32 v{VOFF+1}, v{VOFF+1}, v20
    s_lshl_b32 s47, s37, 2
    s_lshl_b32 s48, s38, 1
    s_add_u32 s47, s47, s48
    s_lshl_b32 s47, s47, 17
    s_lshl_b32 s48, s39, 8
    s_add_u32 s45, s47, s48
    s_mul_i32 s46, s39, {WO_NSLOT*8192}
    s_add_u32 s46, s46, {WO_R}
    """)
    a(f"""
    v_lshrrev_b32 v20, 2, v3
    v_and_b32 v21, 3, v3
    v_lshlrev_b32 v22, 2, v2
    v_add_u32 v20, v20, v22
    v_and_b32 v22, 7, v20
    v_lshlrev_b32 v22, 5, v22
    v_lshlrev_b32 v20, 8, v20
    v_add_u32 v20, v20, v22
    v_lshlrev_b32 v21, 3, v21
    v_add_u32 v20, v20, v21
    v_add_u32 v{VADDR}, s46, v20
    """)
    for dt in range(1, 8):
        a(f"v_xor_b32 v{VADDR+dt}, {dt*32}, v{VADDR}")
    a(f"""
    v_mov_b32 v22, {O_STRIDE}
    v_mul_lo_u32 v22, v3, v22
    v_lshlrev_b32 v23, 4, v2
    v_add_u32 v22, v22, v23
    v_add_u32 v24, {O_BASE}, v22
    v_add_u32 v25, {O_BASE+16*O_STRIDE}, v22
    v_add_u32 v26, {O_BASE+32*O_STRIDE}, v22
    v_add_u32 v27, {O_BASE+48*O_STRIDE}, v22
    v_add_u32 v28, {O_BASE+64*O_STRIDE}, v22
    """)

    def wo_dma(ck):
        slot = ck % WO_NSLOT
        for i in range(8):
            a(f"s_add_u32 s47, s46, {slot*8192+i*1024}")
            a("s_mov_b32 m0, s47")
            a(f"s_add_u32 s48, s45, {(ck*32+i*4)*1024}")
            a(f"buffer_load_dwordx4 v{VOFF + i % 2}, s[24:27], s48 offen lds")

    for ck in range(WO_NSLOT - 1):
        wo_dma(ck)
    for i in range(160):
        a(f"v_accvgpr_write_b32 a{i}, 0")
    AFB = [32, 64]
    BFB = [96, 116]

    def oreads(ck, buf):
        slot = ck % WO_NSLOT
        for ct in range(8):
            a(f"ds_read_b64_tr_b16 {vr(AFB[buf]+ct*4,2)}, v{VADDR+ct} offset:{slot*8192}")
            a(f"ds_read_b64_tr_b16 {vr(AFB[buf]+ct*4+2,2)}, v{VADDR+ct} offset:{slot*8192+4096}")
        for qt in range(5):
            a(f"ds_read_b128 {vr(BFB[buf]+qt*4,4)}, v{24+qt} offset:{ck*64}")

    a(f"s_waitcnt vmcnt({8*(WO_NSLOT-2)})")
    oreads(0, 0)
    for ck in range(8):
        buf = ck & 1
        if ck + 1 < 8:
            n_after = 8 * (min(ck + WO_NSLOT - 2, 7) - (ck + 1))
            a(f"s_waitcnt vmcnt({n_after})")
            oreads(ck + 1, buf ^ 1)
            a("s_waitcnt lgkmcnt(15)")
        else:
            a("s_waitcnt lgkmcnt(0)")
        if ck + WO_NSLOT - 1 < 8:
            wo_dma(ck + WO_NSLOT - 1)
        for ct in range(8):
            for qt in range(5):
                d = (ct * 5 + qt) * 4
                a(f"v_mfma_f32_16x16x32_bf16 {ar(d,4)}, {vr(AFB[buf]+ct*4,4)}, {vr(BFB[buf]+qt*4,4)}, {ar(d,4)}")
    a("s_nop 7")
    a("s_nop 7")
    stamp()
    a(f"""
    s_lshl_b32 s47, s37, 1
    s_add_u32 s47, s47, s38
    s_lshl_b32 s47, s47, 4
    s_add_u32 s47, s47, s36           ; part*16 + b
    s_mul_i32 s47, s47, {80*512*4}
    s_lshl_b32 s48, s39, 9
    s_add_u32 s47, s47, s48           ; + w*128*4
    s_add_u32 s47, s47, {WS_P}
    v_lshlrev_b32 v20, 11, v3         ; q*2048
    v_lshlrev_b32 v21, 4, v2          ; 4g*4
    v_add_u32 v20, v20, v21
    """)
    for qt in range(5):
        a(f"s_add_u32 s{52+qt}, s47, {qt*16*2048}")
    for ct in range(8):
        for qt in range(5):
            d = (ct * 5 + qt) * 4
            a(f"buffer_store_dwordx4 {ar(d,4)}, v20, s[28:31], s{52+qt} offen offset:{ct*64}")
    stamp()
    if stamps:
        assert _st[0] <= 21
        a(f"""
        s_mov_b32 s64, s10
        s_mov_b32 s65, s11
        s_mov_b32 s66, {WS_DBG + 256*4*1024}
        s_mov_b32 s67, 0x00020000
        s_lshl_b32 s68, s2, 2
        s_add_u32 s68, s68, s39
        s_lshl_b32 s68, s68, 10
        s_add_u32 s68, s68, {WS_DBG}
        v_mov_b32 v255, s68
        """)
        for i in range(_st[0]):
            a(f"buffer_store_dword v{234+i}, v255, s[64:67], 0 offen offset:{i*4}")
        a("s_waitcnt vmcnt(0)")
    a(f"s_branch {name}_done")
    for (lab, sbuf, back) in rare_blocks:
        a(f"{lab}:")
        rare_path(sbuf, back)
    a(f"{name}_done:")
    a("s_endpgm")
    return a.text(), kernel_desc(name, 256, 240, 72), LDS_K1
```
